```python
import torch

def _softmax(x, axis=-1):
    return torch.softmax(x, dim=axis)
def _gelu(x):
    return torch.nn.functional.gelu(x, approximate="tanh")
def _silu(x):
    return torch.nn.functional.silu(x)
def _sigmoid(x):
    return torch.sigmoid(x)
def _layernorm(x, axis=-1, eps=1e-5):
    m = x.mean(dim=axis, keepdim=True)
    v = x.var(dim=axis, keepdim=True, unbiased=False)
    return (x - m) / torch.sqrt(v + eps)
def _scatter_add(tgt, idx, src, axis=0):
    return tgt.clone().index_add_(axis, idx, src)
def _segment_sum(src, seg, n):
    out = torch.zeros((n,) + src.shape[1:], dtype=src.dtype)
    return out.index_add_(0, seg, src)
def _pad(x, pw):
    flat = tuple(v for pair in reversed(pw) for v in pair)
    return torch.nn.functional.pad(x, flat)

kernel_name = 'recurrent_scan__sliding_block_cached__mixer_s_mlp__prompt'

def setup_inputs():

    _w = (lambda a: (lambda t: t.to(torch.bfloat16) if t.is_floating_point() else t)(torch.as_tensor(a)))
    def _A_setup():
        B, Sq, D = 1, 2048, 576
        Hq, Hkv, Sk, Dh = 32, 16, 2048, 128
        assert Hq % Hkv == 0, (Hq, Hkv)
        return {
            "x": _w((lambda *s: torch.randn(*s, dtype=torch.bfloat16) * 0.05)(B, Sq, D)),
            "k_cache": _w((lambda *s: torch.randn(*s, dtype=torch.bfloat16) * 0.8)(B, Hkv, Sk, Dh)),
            "v_cache": _w((lambda *s: torch.randn(*s, dtype=torch.bfloat16) * 0.8)(B, Hkv, Sk, Dh)),
            "wq": _w((lambda *s: torch.randn(*s, dtype=torch.bfloat16) * 0.8)(D, Hq * Dh) * (D ** -0.5)),
            "wo": _w((lambda *s: torch.randn(*s, dtype=torch.bfloat16) * 0.8)(Hq * Dh, D) * ((Hq * Dh) ** -0.5)),
        }
    _A_in = _A_setup()

    def _B_setup():
        B, S, D, F = 1, 2048, 576, 4608
        return {
            "x":  _w((lambda *s: torch.randn(*s, dtype=torch.bfloat16) * 0.05)(B, S, D)),
            "w1": _w((lambda *s: torch.randn(*s, dtype=torch.bfloat16) * 3.2)(D, D) * (D ** -0.5)),
            "w2": _w((lambda *s: torch.randn(*s, dtype=torch.bfloat16) * 3.2)(D, D) * (D ** -0.5)),
            "w3": _w((lambda *s: torch.randn(*s, dtype=torch.bfloat16) * 3.2)(D, F) * (D ** -0.5)),
            "w4": _w((lambda *s: torch.randn(*s, dtype=torch.bfloat16) * 3.2)(F, D) * (F ** -0.5)),
        }
    _B_in = _B_setup()

    return {
        "A_x": _A_in["x"],
        "A_k_cache": _A_in["k_cache"],
        "A_v_cache": _A_in["v_cache"],
        "A_wq": _A_in["wq"],
        "A_wo": _A_in["wo"],
        "B_x": _B_in["x"],
        "B_w1": _B_in["w1"],
        "B_w2": _B_in["w2"],
        "B_w3": _B_in["w3"],
        "B_w4": _B_in["w4"],
    }

def reference(A_x, A_k_cache, A_v_cache, A_wq, A_wo, B_x, B_w1, B_w2, B_w3, B_w4):
    def _A_ref(x, k_cache, v_cache, wq, wo):
        B, Sq, D = x.shape
        Hq, Dh = 32, 128
        Hkv, Sk = k_cache.shape[1], k_cache.shape[2]
        W = min(4096, max(256, Sk // 4))
        rep = Hq // Hkv
        q = (lambda x, *d: x.permute(*d))((x @ wq).reshape(B, Sq, Hq, Dh), 0, 2, 1, 3)
        k = (lambda x, n, axis: torch.repeat_interleave(x, n, dim=axis))(k_cache[:, :, Sk - W:, :], rep, axis=1)
        v = (lambda x, n, axis: torch.repeat_interleave(x, n, dim=axis))(v_cache[:, :, Sk - W:, :], rep, axis=1)
        scores = torch.einsum("bhqd,bhkd->bhqk", q, k) * (Dh ** -0.5)
        p = _softmax(scores, axis=-1)
        o = torch.einsum("bhqk,bhkd->bhqd", p, v)
        return (lambda x, *d: x.permute(*d))(o, 0, 2, 1, 3).reshape(B, Sq, Hq * Dh) @ wo

    def _B_ref(x, w1, w2, w3, w4):
        B, S, D = x.shape
        h = _gelu(_layernorm(x, axis=-1) @ w1)
        c = D // 4
        g0 = _pad(h[:, :, 0*c:1*c], ((0, 0), (1, 0), (0, 0)))[:, :S, :]
        g1 = _pad(h[:, :, 1*c:2*c], ((0, 0), (0, 1), (0, 0)))[:, 1:, :]
        g2 = _pad(h[:, :, 2*c:3*c], ((0, 0), (2, 0), (0, 0)))[:, :S, :]
        g3 = _pad(h[:, :, 3*c:   ], ((0, 0), (0, 2), (0, 0)))[:, 2:, :]
        hs = torch.concatenate([g0, g1, g2, g3], axis=-1) @ w2
        x1 = x + hs
        h2 = _gelu(_layernorm(x1, axis=-1) @ w3) @ w4
        return x1 + h2

    x = A_x
    xn = _layernorm(x, axis=-1)
    s = _A_ref(xn, A_k_cache, A_v_cache, A_wq, A_wo)
    g = _silu(_B_ref(xn, B_w1, B_w2, B_w3, B_w4))
    return x + s * g
```

```python
import re

_RNG = re.compile(r'^([vas])\[(\d+):(\d+)\]$')
_ONE = re.compile(r'^([vas])(\d+)$')


def regs_of(op):
    op = op.strip()
    neg = op.startswith('-')
    if neg:
        op = op[1:]
    if op.startswith('|') and op.endswith('|'):
        op = op[1:-1]
    if op.startswith('abs(') and op.endswith(')'):
        op = op[4:-1]
    m = _RNG.match(op)
    if m:
        return [m.group(1) + str(i) for i in range(int(m.group(2)), int(m.group(3)) + 1)]
    m = _ONE.match(op)
    if m:
        return [op]
    if op in ('vcc', 'exec', 'm0', 'scc'):
        return [op]
    if op in ('vcc_lo', 'vcc_hi'):
        return ['vcc']
    if op in ('exec_lo', 'exec_hi'):
        return ['exec']
    return []


TRANS = ('v_exp_f32', 'v_log_f32', 'v_rcp_f32', 'v_rsq_f32', 'v_sqrt_f32')
NOSCC = ('s_mov_b32', 's_mov_b64', 's_mul_i32', 's_cselect_b32', 's_cselect_b64', 's_movk_i32', 's_getpc_b64',
         's_mul_hi_u32', 's_getreg_b32')


class I:
    __slots__ = ('txt', 'kind', 'rd', 'wr', 'pos', 'seq', 'tag', 'need', 'slot', 'srcC', 'passes', 'ab', 'data',
                 'cost', 'dpp', 'mn', 'glue')

    def __init__(self, txt, kind=None, tag=None, need=None, slot=None):
        self.txt = txt
        self.tag = tag
        self.need = need
        self.slot = slot
        self.pos = None
        self.seq = None
        self.srcC = []
        self.ab = []
        self.data = []
        self.passes = 0
        self.dpp = False
        self.glue = False
        self.rd = []
        self.wr = []
        self.mn = txt.split()[0] if txt else ''
        if kind is not None:
            self.kind = kind
            self.cost = 4
            return
        self._parse()

    def _parse(self):
        t = self.txt
        parts = t.split(None, 1)
        mn = parts[0]
        rest = parts[1] if len(parts) > 1 else ''
        ops = [o.strip() for o in rest.split(',')]
        mods = ''
        if ops:
            l = ops[-1].split(None, 1)
        clean = []
        for o in ops:
            w = o.split()
            if not w:
                continue
            clean.append(w[0])
            if len(w) > 1:
                break
        ops = clean
        R = [regs_of(o) for o in ops]
        self.cost = 4
        base = mn.replace('_e32', '').replace('_e64', '')
        if base.startswith('v_mfma'):
            self.kind = 'mfma'
            self.passes = 8 if '32x32x16' in base else 4
            self.wr = R[0]
            self.ab = R[1] + R[2]
            self.srcC = R[3]
            self.rd = self.ab + self.srcC
            self.cost = 8
        elif base.startswith('ds_read'):
            self.kind = 'dsr'
            self.wr = R[0]
            self.rd = R[1]
        elif base.startswith('ds_write'):
            self.kind = 'dsw'
            self.rd = sum(R, [])
        elif base.startswith('ds_'):
            self.kind = 'dsr'
            self.wr = R[0]
            self.rd = sum(R[1:], [])
        elif base.startswith('buffer_load') or base.startswith('global_load'):
            if re.search(r'\blds\b', t):
                self.kind = 'dma'
                self.rd = sum(R, []) + ['m0']
            else:
                self.kind = 'vld'
                self.wr = R[0]
                self.rd = sum(R[1:], [])
        elif base.startswith('buffer_store') or base.startswith('buffer_atomic'):
            self.kind = 'vst'
            self.rd = sum(R, [])
            if 'x4' in base or 'x3' in base:
                self.data = R[0]
        elif base.startswith('s_load') or base in ('s_memtime', 's_memrealtime'):
            self.kind = 'smem'
            self.wr = R[0]
            self.rd = sum(R[1:], [])
        elif base == 's_waitcnt':
            self.kind = 'wait'
        elif base == 's_barrier':
            self.kind = 'bar'
        elif base == 's_nop':
            self.kind = 'nop'
            self.cost = 4 * (int(ops[0]) + 1)
        elif base.startswith('s_cbranch') or base == 's_branch':
            self.kind = 'branch'
            if 'vcc' in base:
                self.rd = ['vcc']
            elif 'scc' in base:
                self.rd = ['scc']
        elif base in ('s_endpgm', 's_sleep', 's_setprio'):
            self.kind = 'misc'
        elif base.startswith('s_cmp') or base.startswith('s_bitcmp'):
            self.kind = 'salu'
            self.rd = sum(R, [])
            self.wr = ['scc']
        elif base.startswith('s_'):
            self.kind = 'salu'
            self.wr = list(R[0])
            self.rd = sum(R[1:], [])
            if base.startswith('s_cselect') or base.startswith('s_addc') or base.startswith('s_subb'):
                self.rd.append('scc')
            if base not in NOSCC:
                self.wr.append('scc')
        elif base.startswith('v_permlane'):
            self.kind = 'perm'
            self.wr = R[0] + R[1]
            self.rd = R[0] + R[1]
        elif base.startswith('v_readfirstlane') or base.startswith('v_readlane'):
            self.kind = 'rdlane'
            self.wr = R[0]
            self.rd = sum(R[1:], [])
        elif base.startswith('v_'):
            self.kind = 'trans' if base in TRANS else ('dot' if base.startswith('v_dot') else 'valu')
            if self.kind == 'trans':
                self.cost = 8
            self.wr = list(R[0])
            self.rd = sum(R[1:], [])
            if base.startswith('v_fmac') or base.startswith('v_dot2c'):
                self.rd += R[0]
            if base.startswith('v_add_co') or base.startswith('v_addc_co'):
                self.wr += R[1]
                self.rd = sum(R[2:], [])
            if self.kind == 'dot' and base.startswith('v_dot2_'):
                self.srcC = R[3]
            elif self.kind == 'dot':
                self.srcC = R[0]
            if re.search(r'\b(row_|quad_perm|wave_)', t):
                self.dpp = True
                self.rd += R[0]
        else:
            raise ValueError('cannot parse ' + t)

    def is_valu(self):
        return self.kind in ('valu', 'trans', 'dot', 'perm', 'rdlane')

    def states(self):
        if self.kind == 'nop':
            return self.cost // 4
        if self.kind in ('label', 'comment', 'reset'):
            return 0
        return 1


class Timeline:
    def __init__(self):
        self.items = []
        self.nm = 0

    def at(self, pos, ins):
        if isinstance(ins, str):
            ins = I(ins)
        if isinstance(ins, (list, tuple)):
            for x in ins:
                self.at(pos, x)
            return ins
        ins.pos = pos
        ins.seq = len(self.items)
        self.items.append(ins)
        return ins

    def now(self, ins):
        return self.at(self.nm - 1 + 0.95, ins)

    def mfma(self, txt):
        i = I(txt)
        assert i.kind == 'mfma'
        self.at(float(self.nm), i)
        self.nm += 1
        return self.nm - 1

    def spread(self, ins, a, b):
        groups = []
        for x in ins:
            if isinstance(x, (list, tuple)):
                groups.append([I(y) if isinstance(y, str) else y for y in x])
            else:
                groups.append([I(x) if isinstance(x, str) else x])
        tot = sum(y.cost for g in groups for y in g)
        acc = 0
        for g in groups:
            p = a + (b - a) * acc / max(tot, 1)
            k = int(p)
            pp = k + 0.30 + 0.6 * (p - k)
            for y in g:
                self.at(pp, y)
            acc += sum(y.cost for y in g)

    def linear(self):
        return sorted(self.items, key=lambda i: (i.pos, i.seq))


def insert_waits(prog, lds_age=0, log=None):
    out = []
    lq = []
    vq = []
    cyc = 0
    landed = set()
    pending_dma = {}
    visible = set()
    reads_open = {}
    reads_done_before_bar = set()
    total_reads = {}
    for i in prog:
        if i.kind == 'dsr' and i.slot is not None:
            total_reads[i.slot] = total_reads.get(i.slot, 0) + 1
    total_dma = {}
    for i in prog:
        if i.kind == 'dma' and i.slot is not None:
            total_dma[i.slot] = total_dma.get(i.slot, 0) + 1
    done_reads = {}
    done_dma = {}
    freed = set()

    def pop_l(n):
        for _ in range(n):
            e = lq.pop(0)
            if e[2] is not None:
                done_reads[e[2]] = done_reads.get(e[2], 0) + 1

    def pop_v(n):
        for _ in range(n):
            e = vq.pop(0)
            if e[2] is not None:
                done_dma[e[2]] = done_dma.get(e[2], 0) + 1

    def emit_wait(nv, nl):
        s = []
        if nv is not None:
            s.append('vmcnt(%d)' % nv)
        if nl is not None:
            s.append('lgkmcnt(%d)' % nl)
        out.append(I('s_waitcnt ' + ' '.join(s)))

    for i in prog:
        if i.kind == 'reset':
            if lq:
                emit_wait(None, 0)
                pop_l(len(lq))
            out.append(i)
            continue
        if i.kind == 'waitvm' or i.kind == 'ringbar':
            k = -1
            for t in (i.need or []):
                for idx, e in enumerate(vq):
                    if e[1] == t or (e[2] is not None and ('slot', e[2]) == t):
                        k = max(k, idx)
            nl = None
            if i.kind == 'ringbar' and i.tag == 'drain' and lq:
                nl = 0
            if k >= 0:
                n = len(vq) - 1 - k
                nn = min(n, 63)
                emit_wait(nn, nl)
                pop_v(len(vq) - nn)
            elif nl is not None:
                emit_wait(None, nl)
            if nl is not None:
                pop_l(len(lq))
            if i.kind == 'ringbar':
                out.append(I('s_barrier'))
                for s, c in done_dma.items():
                    if c == total_dma[s]:
                        visible.add(s)
                for s, c in done_reads.items():
                    if c == total_reads[s]:
                        freed.add(s)
                cyc += 8
            continue
        if i.kind == 'wait':
            m = re.search(r'vmcnt\((\d+)\)', i.txt)
            if m:
                n = int(m.group(1))
                if len(vq) > n:
                    pop_v(len(vq) - n)
            m = re.search(r'lgkmcnt\((\d+)\)', i.txt)
            if m:
                n = int(m.group(1))
                if len(lq) > n:
                    pop_l(len(lq) - n)
            out.append(i)
            continue
        touch = set(i.rd) | set(i.wr)
        kl = -1
        for idx, e in enumerate(lq):
            if e[0] & touch:
                kl = idx
        kv = -1
        for idx, e in enumerate(vq):
            if e[0] & touch:
                kv = idx
        nv = nl = None
        if kl >= 0:
            if any(e[3] for e in lq):
                kl = len(lq) - 1
            while kl + 1 < len(lq) and cyc - lq[kl + 1][1] >= lds_age > 0:
                kl += 1
            nl = min(len(lq) - 1 - kl, 15)
        if kv >= 0:
            nv = min(len(vq) - 1 - kv, 63)
        if nv is not None or nl is not None:
            emit_wait(nv, nl)
            if nl is not None:
                pop_l(len(lq) - nl)
            if nv is not None:
                pop_v(len(vq) - nv)
            cyc += 4
        if i.kind in ('dsr', 'dsw'):
            if i.slot is not None:
                assert i.slot in visible, ('read of slot %s before visible' % (i.slot,), i.txt, i.pos)
            lq.append([set(i.wr), cyc, i.slot, False])
        elif i.kind == 'smem':
            lq.append([set(i.wr), cyc, None, True])
        elif i.kind in ('vld', 'vst', 'dma'):
            if i.kind == 'dma' and i.slot is not None and i.need is not None:
                for s in i.need:
                    assert s not in total_reads or s in freed, ('dma into slot %s before %s freed' % (i.slot, s), i.pos)
                    assert s not in total_dma or done_dma.get(s, 0) == total_dma[s], ('dma WAW', i.slot, s)
            vq.append([set(i.wr), i.tag, i.slot if i.kind == 'dma' else None])
        out.append(i)
        if i.kind == 'mfma':
            cyc += 4 * i.passes * 0.6
        else:
            cyc += i.cost * 0.5
    return out


def hazard_need(p, c):
    n = 0
    pw = set(p.wr)
    crd = set(c.rd)
    cwr = set(c.wr)
    if p.is_valu():
        vw = {r for r in pw if r[0] in 'va' and r != 'vcc'}
        sw = {r for r in pw if r[0] == 's' and r != 'scc' or r == 'vcc'}
        if c.kind == 'mfma' and vw & crd:
            n = max(n, 3 if p.kind == 'dot' else 2)
        if p.kind == 'trans' and c.is_valu() and c.kind != 'trans' and vw & crd:
            n = max(n, 1)
        if p.kind == 'trans' and c.kind in ('vst', 'dsw', 'vld', 'dsr', 'dma') and vw & crd:
            n = max(n, 1)
        if c.kind == 'perm' and vw & crd:
            n = max(n, 2)
        if c.dpp and vw & crd:
            n = max(n, 2)
        if c.kind == 'rdlane' and vw & crd:
            n = max(n, 1)
        if sw:
            if c.is_valu() and sw & crd:
                n = max(n, 4 if c.kind == 'rdlane' else 2)
            if c.kind in ('vld', 'vst', 'dma') and sw & crd:
                n = max(n, 5)
            if c.kind in ('salu', 'branch', 'smem') and sw & crd:
                n = max(n, 2)
        if p.kind == 'dot' and vw & (crd | cwr):
            same = c.kind == 'dot' and c.mn == p.mn
            if same and not (vw & (crd - set(c.srcC))):
                pass
            else:
                n = max(n, 3)
    if p.kind == 'mfma':
        big = p.passes == 8
        if c.kind == 'mfma':
            if pw & set(c.ab):
                n = max(n, 12 if big else 8)
            if pw & set(c.srcC):
                if not (c.srcC == p.wr and c.passes == p.passes):
                    n = max(n, 10 if big else 6)
            if pw & cwr and c.passes != p.passes:
                n = max(n, 12 if big else 8)
        elif c.kind not in ('salu', 'wait', 'bar', 'nop', 'branch', 'misc', 'label', 'comment', 'smem'):
            if pw & (crd | cwr):
                n = max(n, 12 if big else 8)
            if c.is_valu() and set(p.srcC) & cwr:
                n = max(n, 7 if big else 3)
    if p.kind == 'vst' and p.data and set(p.data) & cwr:
        n = max(n, 2)
    if p.kind == 'salu' and 'm0' in pw and c.kind == 'dma':
        n = max(n, 1)
    return n


def fix_hazards(prog, stats=None):
    out = []
    for c in prog:
        need = 0
        dist = 0
        for p in reversed(out):
            if dist >= 20:
                break
            h = hazard_need(p, c)
            if h > dist:
                need = max(need, h - dist)
            dist += p.states()
        while need > 0:
            k = min(need, 16)
            out.append(I('s_nop %d' % (k - 1)))
            if stats is not None:
                stats.append((c.pos, k, c.txt))
            need -= k
        out.append(c)
    return out


def render(prog):
    L = []
    for i in prog:
        if i.kind == 'label':
            L.append(i.txt + ':')
        elif i.kind == 'comment':
            L.append('; ' + i.txt)
        elif i.kind == 'reset':
            continue
        else:
            L.append(i.txt)
    return '\n'.join(L) + '\n'
```

```python
import math, sys
from ir import *

NAME = 'recurrent_scan__sliding_block_cached__mixer_s_mlp__prompt_kernel'
ROW = 1152
ACT = 2048 * ROW
OFF_H, OFF_X1, OFF_Y = 0, ACT, 2 * ACT
PART = 147456
OFF_SP = 3 * ACT
OFF_HP = OFF_SP + 256 * PART
OFF_DUMP = OFF_HP + 256 * PART
WS_SIZE = OFF_DUMP + (1 << 24)
SLOT = 36864
LDS_BYTES = 163840
OOB = 0x80000000

SX, SK, SV, SWQ, SWO, SW1, SW2, SW3, SW4, SOUT, SDBG, SWS, SH = [4 + 4 * i for i in range(13)]
sW, sJ, sRB, sJJ = 56, 57, 58, 59
sQ, sB1, sB2, sKb, sVb, sOb, s3p, s3s, s4a, s4c = range(60, 70)
sL8, sL9, sL4 = 70, 71, 72
sT0, sT1, sT2, sT3 = 73, 74, 75, 76
sD = 77
sPS = 78
sONE, sLO, sHI = 79, 80, 81
sCNT = 82
sRB4 = 83
sFB = 84
sP1, sP2 = 85, 86
sTM = 88


def srd(n):
    return 's[%d:%d]' % (n, n + 3)


def vr(a, n=1):
    return 'v%d' % a if n == 1 else 'v[%d:%d]' % (a, a + n - 1)


def ar(a, n=1):
    return 'a%d' % a if n == 1 else 'a[%d:%d]' % (a, a + n - 1)


def f2u(x):
    import struct
    return struct.unpack('<I', struct.pack('<f', x))[0]


vLANE = 1
vP0, vP1, vKS = 2, 5, 8
vDA, vDB, vDC = 11, 15, 19
vXO = 23
vM, vRSTD, vRQ = 24, 25, 26
vC0, vC1, vIR = 27, 28, 29
vFLAG, vPOLL = 30, 31
FR0, NFR = 32, 8
GK0 = -1.5957691216057308 * 1.4426950408889634
GK1 = GK0 * 0.044715


class Gen:
    def __init__(self, stop=None, D=5, lds_age=70, stamps=False):
        self.T = Timeline()
        self.stop = stop
        self.D = D
        self.lds_age = lds_age
        self.stamps = stamps
        self.uses = []
        self.tail = []
        self.slots = []
        self.npoll = 0
        self.extra_need = {}
        self.after_bar = {}

    def mm(self, acc, frag, b, c=None):
        if frag is not None:
            self.uses.append([self.T.nm, frag[0], frag[1], frag[2], self.T.nm])
        else:
            self.uses[-1][4] = self.T.nm
        f = FR0 + 4 * ((len(self.uses) - 1) % NFR)
        return self.T.mfma('v_mfma_f32_32x32x16_bf16 %s, %s, %s, %s' % (acc, vr(f, 4), b, acc if c is None else c))

    def dma_group(self, slot, srdn, vq, n, sbase, soff, slds, ldsoff, need):
        base = (slot % 4) * SLOT + ldsoff
        g = [[I('s_add_u32 m0, s%d, %d' % (slds, base)), I('s_add_u32 s%d, s%d, %d' % (sD, sbase, soff))]]
        for i in range(n):
            ins = I('buffer_load_dwordx4 v%d, %s, s%d offen offset:%d lds' % (vq + i, srd(srdn), sD, i * 1024))
            ins.slot = slot
            ins.need = need
            if i == 0:
                g[0].append(ins)
            else:
                g.append(ins)
        return g

    def voff_pair(self, dst, pitch, t0, t1):
        L = ['v_lshrrev_b32 v%d, 3, v%d' % (t0, vLANE),
             'v_and_b32 v%d, 7, v%d' % (t1, vLANE),
             'v_lshlrev_b32 v%d, 4, v%d' % (t1, t1),
             'v_mul_u32_u24 v%d, %d, v%d' % (dst, pitch, t0),
             'v_lshlrev_b32 v%d, 5, v%d' % (t0, t0),
             'v_and_b32 v%d, 64, v%d' % (t0, t0),
             'v_xor_b32 v%d, v%d, v%d' % (t1, t0, t1),
             'v_add_u32 v%d, v%d, v%d' % (dst, dst, t1)]
        for i in range(1, 4):
            L.append('v_add_u32 v%d, %d, v%d' % (dst + i, i * (8 * pitch - 1024), dst))
        return L

    def gelu(self, regs, tmp, unit):
        L = []
        for g in range(0, len(regs), 4):
            rs = regs[g:g + 4]
            for k, r in enumerate(rs): L.append('v_mul_f32 v%d, v%d, v%d' % (tmp + k, r, r))
            for k, r in enumerate(rs): L.append('v_fma_f32 v%d, v%d, v%d, v%d' % (tmp + k, tmp + k, vC1, vC0))
            for k, r in enumerate(rs): L.append('v_mul_f32 v%d, v%d, v%d' % (tmp + k, tmp + k, r))
            for k, r in enumerate(rs): L.append('v_exp_f32 v%d, v%d' % (tmp + k, tmp + k))
            for k, r in enumerate(rs):
                if unit: L.append('v_add_f32 v%d, 1.0, v%d' % (tmp + k, tmp + k))
                else: L.append('v_fma_f32 v%d, v%d, v%d, v%d' % (tmp + k, tmp + k, vIR, vIR))
            for k, r in enumerate(rs): L.append('v_rcp_f32 v%d, v%d' % (tmp + k, tmp + k))
            for k, r in enumerate(rs): L.append('v_mul_f32 v%d, v%d, v%d' % (r, r, tmp + k))
            L.append(('cvt', g))
        return L

    def poll_issue(self, vaddr, off):
        return I('buffer_load_dword v%d, v%d, %s, 0 offen offset:%d sc1' % (vPOLL, vaddr, srd(SDBG), off))

    def poll_check(self, vaddr, off, shift, expect):
        n = self.npoll
        self.npoll += 1
        g = [I('v_bfe_u32 v%d, v%d, %d, 16' % (vPOLL, vPOLL, shift)),
             I('v_cmp_ne_u32 vcc, %d, v%d' % (expect, vPOLL)),
             I('s_cbranch_vccnz L_poll%d' % n),
             I('L_pollok%d' % n, kind='label')]
        self.tail += ['L_poll%d:' % n,
                      's_sleep 2',
                      'buffer_load_dword v%d, v%d, %s, 0 offen offset:%d sc1' % (vPOLL, vaddr, srd(SDBG), off),
                      's_sub_u32 s%d, s%d, 1' % (sCNT, sCNT),
                      's_cmp_eq_u32 s%d, 0' % sCNT,
                      's_cbranch_scc1 L_end',
                      's_waitcnt vmcnt(0)',
                      'v_bfe_u32 v%d, v%d, %d, 16' % (vPOLL, vPOLL, shift),
                      'v_cmp_ne_u32 vcc, %d, v%d' % (expect, vPOLL),
                      's_nop 1',
                      's_cbranch_vccnz L_poll%d' % n,
                      's_branch L_pollok%d' % n]
        return g

    def signal(self, tmp, off, val, mask=None):
        L = [I('v_mov_b32 v%d, %d' % (tmp, val))]
        if mask is None:
            L.append(I('buffer_atomic_add v%d, v%d, %s, s%d offen offset:%d sc1' % (tmp, vFLAG, srd(SDBG), sRB4, off)))
        else:
            L.append(I('v_or_b32 v%d, s%d, v%d' % (tmp + 1, mask, vFLAG)))
            L.append(I('buffer_atomic_add v%d, v%d, %s, s%d offen offset:%d sc1' % (tmp, tmp + 1, srd(SDBG), sRB4, off)))
        return L

    def stamp(self, k):
        if self.stamps:
            self.T.now(I('STAMP%d' % k, kind='stamp'))

    def define_slots(self):
        S = []

        def pair36(slot, srdn, vq, sbase, soff, pitch, third=None):
            nd = [slot - 4] if slot >= 4 else []
            if third is None:
                return (self.dma_group(slot, srdn, vq, 4, sbase, soff, sL9, 0, nd)
                        + self.dma_group(slot, srdn, vq, 4, sbase, soff + 32 * pitch, sL9, 4096, nd)
                        + self.dma_group(slot, srdn, vq, 1, sbase, soff + 64 * pitch, sL9, 8192, nd))
            return (self.dma_group(slot, srdn, vq, 4, sbase, soff, sL9, 0, nd)
                    + self.dma_group(slot, srdn, vq, 1, sbase, soff + 32 * pitch, sL9, 4096, nd)
                    + self.dma_group(slot, srdn, vq, 4, third, soff, sL9, 5120, nd))

        def pair32(slot, srdn, vq, sbase, soff, pitch):
            nd = [slot - 4] if slot >= 4 else []
            return (self.dma_group(slot, srdn, vq, 4, sbase, soff, sL8, 0, nd)
                    + self.dma_group(slot, srdn, vq, 4, sbase, soff + 32 * pitch, sL8, 4096, nd))
        s = 0
        for i in range(2):
            S.append(pair36(s, SW1, vDA, sB1, i * 288 * ROW, ROW)); s += 1
        for i in range(9):
            S.append(pair32(s, SWQ, vDB, sQ, i * 64 * 8192, 8192)); s += 1
        for i in range(2):
            S.append(pair36(s, SW2, vDA, sB2, i * 288 * ROW, ROW)); s += 1
        for i in range(8):
            nd = [s - 4]
            S.append(self.dma_group(s, SK, vDB, 4, sKb, i * 16384, sL4, 0, nd)
                     + self.dma_group(s, SV, vDC, 4, sVb, i * 16384, sL4, 16384, nd)); s += 1
        for i in range(9):
            S.append(pair32(s, SWO, vDA, sOb, i * 128, ROW)); s += 1
        for i in range(8):
            S.append(pair36(s, SW3, vDB, s3p, (i // 2) * 128 + (i % 2) * 288 * 9216, 9216)); s += 1
        nd = [s - 4]
        S.append(self.dma_group(s, SW3, vDC, 4, s3s, 0, sL9, 0, nd)
                 + self.dma_group(s, SW3, vDC, 4, s3s, 64 * 9216, sL9, 4096, nd)
                 + self.dma_group(s, SW3, vDC, 1, s3s, 128 * 9216, sL9, 8192, nd)); s += 1
        for i in range(9):
            S.append(pair36(s, SW4, vDA, s4a, i * 128, ROW, third=s4c)); s += 1
        self.slots = S

    def prologue(self):
        T = self.T
        n = T.now
        n('s_cmp_ge_u32 s2, 256')
        n('s_cbranch_scc1 L_end')
        for sr, off in ((SX, 0), (SW1, 48), (SWQ, 24), (SK, 8), (SV, 16), (SWO, 32), (SW2, 56), (SW3, 64), (SW4, 72),
                        (SOUT, 80), (SDBG, 88), (SWS, 96), (SH, 96)):
            n('s_load_dwordx2 s[%d:%d], s[0:1], %d' % (sr, sr + 1, off))
        n('v_lshrrev_b32 v40, 6, v0')
        n('v_and_b32 v%d, 63, v0' % vLANE)
        n('v_readfirstlane_b32 s%d, v40' % sW)
        n('s_and_b32 s%d, s2, 7' % sJ)
        n('s_lshl_b32 s%d, s%d, 1' % (sJ, sJ))
        n('s_bfe_u32 s%d, s2, 0x10003' % sT0)
        n('s_add_u32 s%d, s%d, s%d' % (sJ, sJ, sT0))
        n('s_lshr_b32 s%d, s2, 4' % sRB)
        n('s_add_u32 s%d, s%d, s%d' % (sJJ, sJ, sRB))
        n('s_and_b32 s%d, s%d, 15' % (sJJ, sJJ))
        n('s_lshl_b32 s%d, s%d, 2' % (sRB4, sRB))
        n('s_add_u32 s%d, s%d, s%d' % (sT0, sRB4, sW))
        n('s_mul_i32 s%d, s%d, %d' % (sT0, sT0, 32 * ROW))
        n('v_and_b32 v40, 31, v%d' % vLANE)
        n('v_mul_u32_u24 v40, %d, v40' % ROW)
        n('v_lshrrev_b32 v41, 5, v%d' % vLANE)
        n('v_lshlrev_b32 v41, 4, v41')
        n('v_add3_u32 v%d, v40, v41, s%d' % (vXO, sT0))
        sizes = {SX: ACT, SK: 8388608, SV: 8388608, SWQ: 576 * 8192, SWO: 4096 * ROW, SW1: 576 * ROW, SW2: 576 * ROW,
                 SW3: 576 * 9216, SW4: 4608 * ROW, SOUT: ACT, SDBG: 256, SWS: WS_SIZE, SH: ACT}
        for sr, sz in sizes.items():
            if sr not in (SW1, SW2):
                n('s_mov_b32 s%d, %d' % (sr + 2, sz))
            n('s_mov_b32 s%d, 0x20000' % (sr + 3))
        n('s_cmp_lt_u32 s%d, 9' % sJJ)
        n('s_cselect_b32 s%d, %d, 0' % (SW1 + 2, 576 * ROW))
        n('s_cselect_b32 s%d, 0, %d' % (sP1, OOB))
        n('s_cmp_ge_u32 s%d, 7' % sJJ)
        n('s_cselect_b32 s%d, %d, 0' % (SW2 + 2, 576 * ROW))
        n('s_cselect_b32 s%d, 0, %d' % (sP2, OOB))
        n('s_waitcnt lgkmcnt(0)')
        X = self.X = 112
        for s in range(36):
            n('buffer_load_dwordx4 %s, v%d, %s, 0 offen offset:%d' % (vr(X + 4 * s, 4), vXO, srd(SX), s * 32))
        n('s_lshl_b32 s%d, s%d, 13' % (sL8, sW))
        n('s_mul_i32 s%d, s%d, 9216' % (sL9, sW))
        n('s_lshl_b32 s%d, s%d, 12' % (sL4, sW))
        n('s_mul_i32 s%d, s%d, %d' % (sT0, sW, 72 * ROW))
        n('s_lshl_b32 s%d, s%d, 7' % (sT1, sJJ))
        n('s_add_u32 s%d, s%d, s%d' % (sB1, sT0, sT1))
        n('s_sub_u32 s%d, s%d, %d' % (sB2, sB1, 7 * 128))
        n('s_cmp_ge_u32 s%d, 7' % sJJ)
        n('s_cselect_b32 s%d, s%d, 0' % (sB2, sB2))
        n('s_lshl_b32 s%d, s%d, 9' % (sQ, sJ))
        n('s_lshl_b32 s%d, s%d, 7' % (sT1, sW))
        n('s_add_u32 s%d, s%d, s%d' % (sQ, sQ, sT1))
        for x in self.voff_pair(vDA, ROW, 40, 41): n(x)
        for x in self.voff_pair(vDB, 8192, 40, 41): n(x)
        for sl in range(3):
            for g in self.slots[sl]: n(g)
        n('s_mul_i32 s%d, s%d, %d' % (sT1, sJ, 256 * ROW))
        n('s_add_u32 s%d, s%d, s%d' % (s4a, sT0, sT1))
        n('s_add_u32 s%d, s%d, %d' % (s4c, s4a, 40 * ROW))
        n('s_mul_i32 s%d, s%d, %d' % (sT2, sJ, 32 * ROW))
        n('s_add_u32 s%d, s%d, %d' % (sT2, sT2, 4096 * ROW))
        n('s_cmp_eq_u32 s%d, 3' % sW)
        n('s_cselect_b32 s%d, s%d, s%d' % (s4c, sT2, s4c))
        n('s_mul_i32 s%d, s%d, %d' % (sT2, sW, 64 * ROW))
        n('s_add_u32 s%d, s%d, s%d' % (sOb, sT1, sT2))
        n('s_mul_i32 s%d, s%d, %d' % (sT2, sW, 72 * 9216))
        n('s_lshl_b32 s%d, s%d, 9' % (sT3, sJ))
        n('s_add_u32 s%d, s%d, s%d' % (s3p, sT2, sT3))
        n('s_lshl_b32 s%d, s%d, 1' % (sT2, sT2))
        n('s_lshl_b32 s%d, s%d, 6' % (sT3, sJ))
        n('s_add_u32 s%d, s%d, s%d' % (s3s, sT2, sT3))
        n('s_add_u32 s%d, s%d, 8192' % (s3s, s3s))
        n('s_lshl_b32 s%d, s%d, 19' % (sT1, sJ))
        n('s_add_u32 s%d, s%d, %d' % (sT1, sT1, 1536 * 256))
        n('s_lshr_b32 s%d, s%d, 1' % (sT2, sW))
        n('s_and_b32 s%d, s%d, 1' % (sT3, sW))
        n('s_lshl_b32 s%d, s%d, 13' % (sKb, sT2))
        n('s_add_u32 s%d, s%d, s%d' % (sKb, sKb, sT1))
        n('s_lshl_b32 s%d, s%d, 7' % (sD, sT3))
        n('s_add_u32 s%d, s%d, s%d' % (sKb, sKb, sD))
        n('s_sub_u32 s%d, s%d, 2976' % (sKb, sKb))
        n('s_lshl_b32 s%d, s%d, 7' % (sVb, sT2))
        n('s_add_u32 s%d, s%d, s%d' % (sVb, sVb, sT1))
        n('s_lshl_b32 s%d, s%d, 13' % (sD, sT3))
        n('s_add_u32 s%d, s%d, s%d' % (sVb, sVb, sD))
        n('s_mov_b32 s%d, 0x3f803f80' % sONE)
        n('s_mov_b32 s%d, 0x00003f80' % sLO)
        n('s_mov_b32 s%d, 0x3f800000' % sHI)
        n('s_mov_b32 s%d, 0x40000' % sCNT)
        n('v_and_b32 v40, 1, v%d' % vLANE)
        n('v_lshlrev_b32 v40, 4, v40')
        n('v_and_b32 v41, 2, v%d' % vLANE)
        n('v_lshlrev_b32 v41, 2, v41')
        n('v_add_u32 v40, v40, v41')
        n('v_and_b32 v41, 16, v%d' % vLANE)
        n('v_lshlrev_b32 v41, 1, v41')
        n('v_add_u32 v40, v40, v41')
        n('v_and_b32 v41, 12, v%d' % vLANE)
        n('v_lshlrev_b32 v42, 5, v41')
        n('v_add_u32 v42, v42, v40')
        n('v_and_b32 v43, 8, v%d' % vLANE)
        n('v_lshlrev_b32 v43, 3, v43')
        n('v_add_u32 v42, v42, v43')
        n('v_and_b32 v43, 32, v%d' % vLANE)
        n('v_lshlrev_b32 v43, 5, v43')
        n('v_add_u32 v%d, v42, v43' % vP0)
        n('v_xor_b32 v%d, 64, v%d' % (vP1, vP0))
        n('v_lshlrev_b32 v%d, 4, v%d' % (vKS, vLANE))
        for b in (vP0, vP1, vKS):
            n('v_add_u32 v%d, 0x10000, v%d' % (b + 1, b))
            n('v_add_u32 v%d, 0x20000, v%d' % (b + 2, b))
        n('v_mov_b32 v40, %d' % OOB)
        n('v_cmp_eq_u32 vcc, 0, v0')
        n('v_cndmask_b32 v%d, v40, 0, vcc' % vFLAG)
        for k in range(4): n('v_mov_b32 v%d, 0' % (44 + k))
        for r in range(144):
            n('v_dot2c_f32_bf16 v%d, s%d, v%d' % (44 + r % 4, sONE, X + r))
        n('v_add_f32 v44, v44, v45')
        n('v_add_f32 v46, v46, v47')
        n('v_add_f32 v44, v44, v46')
        n('v_mov_b32 v45, v44')
        n('v_permlane32_swap_b32 v44, v45')
        n('v_add_f32 v44, v44, v45')
        n('v_mul_f32 v%d, 0x%08x, v44' % (vM, f2u(-1.0 / 576)))
        for k in range(4): n('v_mov_b32 v%d, 0' % (44 + k))
        for g in range(36):
            t = 64 + 8 * (g % 2)
            for k in range(4):
                n('v_dot2_f32_bf16 v%d, v%d, s%d, v%d' % (t + 2 * k, X + 4 * g + k, sLO, vM))
                n('v_dot2_f32_bf16 v%d, v%d, s%d, v%d' % (t + 2 * k + 1, X + 4 * g + k, sHI, vM))
            if g > 0:
                for k in range(4):
                    n('v_dot2c_f32_bf16 v%d, v%d, v%d' % (44 + k, X + 4 * (g - 1) + k, X + 4 * (g - 1) + k))
            for k in range(4):
                n('v_cvt_pk_bf16_f32 v%d, v%d, v%d' % (X + 4 * g + k, t + 2 * k, t + 2 * k + 1))
        for k in range(4):
            n('v_dot2c_f32_bf16 v%d, v%d, v%d' % (44 + k, X + 140 + k, X + 140 + k))
        n('v_add_f32 v44, v44, v45')
        n('v_add_f32 v46, v46, v47')
        n('v_add_f32 v44, v44, v46')
        n('v_mov_b32 v45, v44')
        n('v_permlane32_swap_b32 v44, v45')
        n('v_add_f32 v44, v44, v45')
        n('v_mul_f32 v44, 0x%08x, v44' % f2u(1.0 / 576))
        n('v_add_f32 v45, 0x%08x, v44' % f2u(1e-5))
        n('v_rsq_f32 v%d, v45' % vRSTD)
        n('v_mul_f32 v%d, 0x%08x, v%d' % (vRQ, f2u(128 ** -0.5 * math.log2(math.e)), vRSTD))
        n('v_mul_f32 v45, v%d, v%d' % (vRSTD, vRSTD))
        n('v_mul_f32 v45, v45, v44')
        n('v_add_f32 v45, 0x%08x, v45' % f2u(1e-5))
        n('v_rsq_f32 v45, v45')
        n('v_mul_f32 v45, v45, v%d' % vRSTD)
        n('v_rcp_f32 v%d, v45' % vIR)
        n('v_mul_f32 v%d, 0x%08x, v45' % (vC0, f2u(GK0)))
        n('v_mul_f32 v46, v45, v45')
        n('v_mul_f32 v46, v46, v45')
        n('v_mul_f32 v%d, 0x%08x, v46' % (vC1, f2u(GK1)))

    def cvt_store_expand(self, L, regs, dst, store):
        out = []
        for x in L:
            if isinstance(x, tuple):
                g = x[1]
                out.append('v_cvt_pk_bf16_f32 v%d, v%d, v%d' % (dst + g // 2, regs[g], regs[g + 1]))
                out.append('v_cvt_pk_bf16_f32 v%d, v%d, v%d' % (dst + g // 2 + 1, regs[g + 2], regs[g + 3]))
                if store is not None and g % 8 == 4:
                    out.append(store(g // 8))
            else:
                out.append(x)
        return out

    def pair_phase(self, slot0, nslots, nk, accs, bfrag, first):
        for i in range(nslots):
            for k in range(nk):
                for t in range(2):
                    z = first and i == 0 and k == 0
                    self.mm(accs[t], (slot0 + i, 2 * k * 1024, 'p%d' % t), bfrag(i * nk + k), '0' if z else None)

    def build(self):
        T = self.T
        self.define_slots()
        self.prologue()
        X = self.X
        self.stamp(0)
        self.pair_phase(0, 2, 18, [vr(64, 16), vr(80, 16)], lambda s: vr(X + 4 * s, 4), True)
        q0 = T.nm
        self.stamp(1)
        for i in range(9):
            for k in range(4):
                for t in range(8):
                    self.mm(ar(16 * t, 16), (2 + i, (t // 2) * 8192 + 2 * k * 1024, 'p%d' % (t % 2)),
                            vr(X + 4 * (4 * i + k), 4), '0' if (i == 0 and k == 0) else None)
        regs = list(range(64, 96))
        L = ['s_lshl_b32 s%d, s%d, 7' % (sT0, sJJ),
             'v_add_u32 v100, s%d, v%d' % (sT0, vXO),
             'v_or_b32 v100, s%d, v100' % sP1]
        L += self.cvt_store_expand(
            self.gelu(regs, 96, False), regs, 64,
            lambda q: I('buffer_store_dwordx4 %s, v100, %s, 0 offen offset:%d sc1' % (vr(64 + 4 * q, 4), srd(SH), q * 32),
                        tag='h%d' % q))
        T.spread(L, q0 + 3, q0 + 88)
        self.sig_h = (q0 + 92, ['h3'], self.signal(96, 0, 1, sP1))
        L = ['v_min_u32 v101, 2, v%d' % vLANE,
             'v_add_u32 v101, s%d, v101' % sRB,
             'v_subrev_u32 v101, 1, v101',
             'v_max_i32 v101, 0, v101',
             'v_min_i32 v101, 15, v101',
             'v_lshlrev_b32 v101, 2, v101']
        for k, dl in enumerate((-1, 1, -2, 2)):
            L.append('v_add_u32 v%d, %d, v%d' % (102 + k, (dl * ROW) & 0xffffffff, vXO))
            L.append('v_or_b32 v%d, s%d, v%d' % (102 + k, sP2, 102 + k))
        T.spread(L, q0 + 170, q0 + 180)
        T.at(q0 + 190.5, self.poll_issue(101, 0))
        T.at(q0 + 215.5, self.poll_check(101, 0, 0, 9))

        def hs(s):
            return ar(128 + 4 * s, 4) if s < 32 else vr(64 + 4 * (s - 32), 4)
        L = ['buffer_load_dwordx4 %s, v%d, %s, 0 offen offset:%d sc1' % (hs(s), 102 + s // 9, srd(SH), s * 32)
             for s in range(36)]
        T.spread(L, q0 + 216, q0 + 270)
        kv = ['v_and_b32 v96, 3, v%d' % vLANE,
              'v_and_b32 v97, 4, v%d' % vLANE,
              'v_lshlrev_b32 v97, 1, v97',
              'v_add_u32 v96, v96, v97',
              'v_and_b32 v97, 8, v%d' % vLANE,
              'v_lshrrev_b32 v97, 1, v97',
              'v_add_u32 v96, v96, v97',
              'v_and_b32 v97, 16, v%d' % vLANE,
              'v_add_u32 v96, v96, v97',
              'v_lshlrev_b32 v96, 8, v96',
              'v_lshrrev_b32 v97, 5, v%d' % vLANE,
              'v_lshlrev_b32 v97, 4, v97',
              'v_add_u32 v%d, v96, v97' % (vDB + 3)]
        for i in range(3):
            kv.append('v_add_u32 v%d, %d, v%d' % (vDB + i, (3 - i) * 992, vDB + 3))
        kv += self.voff_pair(vDC, 256, 96, 97)
        self.pre_dma = {13: kv}
        w0 = T.nm
        self.stamp(2)
        self.pair_phase(11, 2, 18, [vr(128, 16), vr(144, 16)], hs, True)
        L = ['s_sub_u32 s%d, s%d, 7' % (sT0, sJJ),
             's_lshl_b32 s%d, s%d, 7' % (sT0, sT0),
             'v_add_u32 v160, s%d, v%d' % (sT0, vXO),
             'v_or_b32 v160, s%d, v160' % sP2]
        L += ['buffer_load_dwordx4 %s, v160, %s, 0 offen offset:%d' % (vr(96 + 4 * q, 4), srd(SX), q * 32) for q in range(4)]
        T.spread(L, w0 + 1, w0 + 6)
        QT = 192
        L = []
        for g in range(0, 128, 4):
            t = 164 + 4 * ((g // 4) % 2)
            for k in range(4): L.append('v_accvgpr_read_b32 v%d, a%d' % (t + k, g + k))
            for k in range(4): L.append('v_mul_f32 v%d, v%d, v%d' % (t + k, t + k, vRQ))
            L.append('v_cvt_pk_bf16_f32 v%d, v%d, v%d' % (QT + g // 2, t, t + 1))
            L.append('v_cvt_pk_bf16_f32 v%d, v%d, v%d' % (QT + g // 2 + 1, t + 2, t + 3))
        T.spread(L, w0 + 3, w0 + 71)
        c0 = T.nm
        self.stamp(3)
        SB = [64, 96]
        PB = [128, 144]
        CB = 160
        vL = [vC0, vC1]
        qk_end = {}
        pv_start = {}

        def qk(u):
            sl = 13 + u // 2
            for s in range(8):
                for hd in range(2):
                    c = None
                    if s == 0:
                        c = '0' if u < 2 else vr(CB + 16 * hd, 16)
                    self.mm(vr(SB[u % 2] + 16 * hd, 16), (sl, ((u % 2) * 8 + s) * 1024, 'k') if hd == 0 else None,
                            vr(QT + 32 * hd + 4 * s, 4), c)
            qk_end[u] = T.nm

        def pv(u):
            sl = 13 + u // 2
            pv_start[u] = T.nm
            for q in range(2):
                ks = (u % 2) * 2 + q
                for dt in range(4):
                    for hd in range(2):
                        self.mm(ar(64 * hd + 16 * dt, 16),
                                (sl, 16384 + (dt // 2) * 8192 + 2 * ks * 1024, 'p%d' % (dt % 2)) if hd == 0 else None,
                                vr(PB[u % 2] + 8 * hd + 4 * q, 4), '0' if (u == 0 and q == 0) else None)
        qk(0)
        for u in range(16):
            if u + 1 < 16: qk(u + 1)
            pv(u)
        L = ['v_mul_f32 v161, v%d, v%d' % (vM, vRSTD)]
        for q in range(4):
            a0 = 128 + 8 * q
            for k in range(4):
                L.append('v_lshlrev_b32 v%d, 16, v%d' % (164 + 2 * k, 96 + 4 * q + k))
                L.append('v_and_b32 v%d, 0xffff0000, v%d' % (165 + 2 * k, 96 + 4 * q + k))
            for k in range(8): L.append('v_fmac_f32 v%d, v%d, v%d' % (a0 + k, 164 + k, vRSTD))
            for k in range(8): L.append('v_add_f32 v%d, v%d, v161' % (a0 + k, a0 + k))
            for k in range(4): L.append('v_cvt_pk_bf16_f32 v%d, v%d, v%d' % (172 + 4 * q + k, a0 + 2 * k, a0 + 2 * k + 1))
            L.append([I('s_mov_b32 s%d, %d' % (sT0, OFF_X1)),
                      I('buffer_store_dwordx4 %s, v160, %s, s%d offen offset:%d sc1' % (vr(172 + 4 * q, 4), srd(SWS), sT0, q * 32),
                        tag='x1%d' % q)])
        T.spread(L, c0 + 2, c0 + 16)
        self.sig_x1 = (c0 + 40, ['x13'], self.signal(vM, 0, 0x10000, sP2))
        for u in range(16):
            S = SB[u % 2]
            P = PB[u % 2]
            L = []
            if u == 0:
                for hd in range(2):
                    b = S + 16 * hd
                    m = vRQ if hd == 0 else vIR
                    L.append('v_max3_f32 v%d, v%d, v%d, v%d' % (m, b, b + 1, b + 2))
                    for k in range(3, 15, 2):
                        L.append('v_max3_f32 v%d, v%d, v%d, v%d' % (m, m, b + k, b + k + 1))
                    L.append('v_max_f32 v%d, v%d, v%d' % (m, m, b + 15))
                for hd in range(2):
                    m = vRQ if hd == 0 else vIR
                    L.append('v_mov_b32 v%d, v%d' % (vL[hd], m))
                for hd in range(2):
                    m = vRQ if hd == 0 else vIR
                    L.append('v_permlane32_swap_b32 v%d, v%d' % (m, vL[hd]))
                for hd in range(2):
                    m = vRQ if hd == 0 else vIR
                    L.append('v_max_f32 v%d, v%d, v%d' % (m, m, vL[hd]))
                for hd in range(2):
                    L.append('v_mov_b32 v%d, 0' % vL[hd])
            for q in range(2):
                for hd in range(2):
                    m = vRQ if hd == 0 else vIR
                    for g in range(2):
                        b = S + 16 * hd + 8 * q + 4 * g
                        if u < 2:
                            for k in range(4): L.append('v_sub_f32 v%d, v%d, v%d' % (b + k, b + k, m))
                        for k in range(4): L.append('v_exp_f32 v%d, v%d' % (b + k, b + k))
                        L.append('v_cvt_pk_bf16_f32 v%d, v%d, v%d' % (P + 8 * hd + 4 * q + 2 * g, b, b + 1))
                        L.append('v_add_f32 v%d, v%d, v%d' % (b, b, b + 1))
                        L.append('v_cvt_pk_bf16_f32 v%d, v%d, v%d' % (P + 8 * hd + 4 * q + 2 * g + 1, b + 2, b + 3))
                        L.append('v_add_f32 v%d, v%d, v%d' % (b + 2, b + 2, b + 3))
                        L.append('v_add_f32 v%d, v%d, v%d' % (vL[hd], vL[hd], b))
                        L.append('v_add_f32 v%d, v%d, v%d' % (vL[hd], vL[hd], b + 2))
            a = qk_end[u] + 2
            b = pv_start[u] + (0 if u == 0 else (2 if u < 15 else 7))
            if u == 0:
                T.spread(L, a, b)
                Lc = []
                for hd in range(2):
                    m = vRQ if hd == 0 else vIR
                    for k in range(16): Lc.append('v_sub_f32 v%d, 0, v%d' % (CB + 16 * hd + k, m))
                T.spread(Lc, pv_start[0] + 1, pv_start[0] + 15)
            else:
                h = len(L) // 2
                mid = min(a + (b - a) / 2.0, pv_start[u])
                T.spread(L[:h], a, mid)
                T.spread(L[h:], mid, b)
        o0 = T.nm
        self.stamp(4)
        lq = qk_end[15]
        T.at(lq - 40.5, [I('v_mov_b32 v%d, s%d' % (vM, sRB4)), self.poll_issue(vM, 0)])
        T.at(lq - 10.5, self.poll_check(vM, 0, 16, 9))
        L = ['s_lshl_b32 s%d, s%d, 4' % (sT0, sRB),
             's_add_u32 s%d, s%d, s%d' % (sT0, sT0, sJ),
             's_lshl_b32 s%d, s%d, 2' % (sT0, sT0),
             's_add_u32 s%d, s%d, s%d' % (sT0, sT0, sW),
             's_mul_i32 s%d, s%d, %d' % (sPS, sT0, SLOT),
             's_mul_i32 s%d, s%d, %d' % (sT0, sT0, 2 * ROW),
             'v_lshrrev_b32 v172, 5, v%d' % vLANE,
             'v_mul_u32_u24 v172, %d, v172' % ROW,
             'v_and_b32 v173, 31, v%d' % vLANE,
             'v_cmp_gt_u32 vcc, 8, v173',
             'v_lshlrev_b32 v173, 4, v173',
             'v_add3_u32 v172, v172, v173, s%d' % sT0,
             'v_mov_b32 v173, %d' % OOB,
             'v_cndmask_b32 v173, v173, v172, vcc',
             'v_cndmask_b32 v174, 0, 1.0, vcc',
             's_mov_b32 s%d, %d' % (sT1, OFF_X1),
             'buffer_load_dwordx4 v[160:163], v172, %s, s%d offen sc1' % (srd(SWS), sT1),
             'buffer_load_dwordx4 v[164:167], v172, %s, s%d offen offset:512 sc1' % (srd(SWS), sT1),
             'buffer_load_dwordx4 v[168:171], v173, %s, s%d offen offset:1024 sc1' % (srd(SWS), sT1),
             's_add_u32 s%d, s%d, %d' % (sPS, sPS, OFF_SP)]
        T.at(lq + 8.5, [I(x) for x in L])
        n = T.now
        for hd in range(2): n('v_mov_b32 v%d, v%d' % (176 + hd, vL[hd]))
        for hd in range(2): n('v_permlane32_swap_b32 v%d, v%d' % (vL[hd], 176 + hd))
        for hd in range(2): n('v_add_f32 v%d, v%d, v%d' % (vL[hd], vL[hd], 176 + hd))
        n('v_add_f32 v177, v%d, v%d' % (vL[0], vL[1]))
        n('v_cmp_ngt_f32 vcc, 0x%08x, v177' % f2u(2.0 ** 20))
        n('s_cbranch_vccnz L_slow')
        n(I('L_slowret', kind='label'))
        for hd in range(2): n('v_rcp_f32 v%d, v%d' % (vL[hd], vL[hd]))
        OT = 192
        Lo = []
        for g in range(0, 128, 4):
            t = 176 + 4 * ((g // 4) % 2)
            G = []
            for k in range(4): G.append('v_accvgpr_read_b32 v%d, a%d' % (t + k, g + k))
            for k in range(4): G.append('v_mul_f32 v%d, v%d, v%d' % (t + k, t + k, vL[g // 64]))
            G.append('v_cvt_pk_bf16_f32 v%d, v%d, v%d' % (OT + g // 2, t, t + 1))
            G.append('v_cvt_pk_bf16_f32 v%d, v%d, v%d' % (OT + g // 2 + 1, t + 2, t + 3))
            Lo.append(G)
        for G in Lo[:4]:
            for x in G: n(x)
        for k in range(2, 16):
            T.spread(Lo[2 * k] + Lo[2 * k + 1], o0 + 2 * k - 4, o0 + 2 * k - 2)

        def out_phase(slot0, nk, bfrag, tagp, last_now):
            starts = []
            for i in range(9):
                starts.append(T.nm)
                a = 64 + 32 * (i % 2)
                self.pair_phase(slot0 + i, 1, nk, [vr(a, 16), vr(a + 16, 16)], bfrag, True)
            starts.append(T.nm)
            for i in range(9):
                a = 64 + 32 * (i % 2)
                L = []
                for q in range(4):
                    for k in range(4):
                        L.append('v_cvt_pk_bf16_f32 v%d, v%d, v%d' % (128 + 4 * q + k, a + 8 * q + 2 * k, a + 8 * q + 2 * k + 1))
                    L.append(I('buffer_store_dwordx4 %s, v%d, %s, s%d offen offset:%d sc1'
                               % (vr(128 + 4 * q, 4), vXO, srd(SWS), sPS, q * 1024), tag='%s%d_%d' % (tagp, i, q)))
                L.append('s_add_u32 s%d, s%d, 4096' % (sPS, sPS))
                if i == 8 and last_now:
                    for x in L: T.now(x)
                else:
                    T.spread(L, starts[i + 1] + 3, starts[i + 1] + 24)
            return starts
        T.at(o0 + 30.5, [I('v_mov_b32 v%d, v%d' % (vRSTD, vXO)), I('v_lshlrev_b32 v%d, 4, v%d' % (vXO, vLANE))])
        out_phase(21, 16, lambda k: vr(OT + 4 * k, 4), 'sp', False)
        L = []
        U = 144
        un = list(range(144, 160)) + list(range(176, 184))
        for k in range(12):
            L.append('v_lshlrev_b32 v%d, 16, v%d' % (un[2 * k], 160 + k))
            L.append('v_and_b32 v%d, 0xffff0000, v%d' % (un[2 * k + 1], 160 + k))
        L.append('v_add_f32 v184, v%d, v%d' % (un[0], un[1]))
        L.append('v_add_f32 v185, v%d, v%d' % (un[2], un[3]))
        for k in range(4, 24): L.append('v_add_f32 v%d, v%d, v%d' % (184 + k % 2, 184 + k % 2, un[k]))
        L.append('v_add_f32 v184, v184, v185')

        def red32(r, t):
            R = []
            for s in (8, 4, 2, 1):
                R.append('v_add_f32_dpp v%d, v%d, v%d row_ror:%d row_mask:0xf bank_mask:0xf' % (r, r, r, s))
            R.append('v_mov_b32 v%d, v%d' % (t, r))
            R.append('v_permlane16_swap_b32 v%d, v%d' % (r, t))
            R.append('v_add_f32 v%d, v%d, v%d' % (r, r, t))
            return R
        L += red32(184, 185)
        L.append('v_mul_f32 v184, 0x%08x, v184' % f2u(1.0 / 576))
        L.append('v_mul_f32 v185, v184, v174')
        for k in range(24): L.append('v_sub_f32 v%d, v%d, v%d' % (un[k], un[k], 184 if k < 16 else 185))
        L.append('v_mul_f32 v184, v%d, v%d' % (un[0], un[0]))
        L.append('v_mul_f32 v185, v%d, v%d' % (un[1], un[1]))
        for k in range(2, 24): L.append('v_fmac_f32 v%d, v%d, v%d' % (184 + k % 2, un[k], un[k]))
        L.append('v_add_f32 v184, v184, v185')
        L += red32(184, 185)
        L.append('v_mov_b32 v185, 0x%08x' % f2u(1e-5))
        L.append('v_fmac_f32 v185, 0x%08x, v184' % f2u(1.0 / 576))
        L.append('v_rsq_f32 v184, v185')
        for k in range(24): L.append('v_mul_f32 v%d, v%d, v184' % (un[k], un[k]))
        for k in range(12): L.append('v_cvt_pk_bf16_f32 v%d, v%d, v%d' % (160 + k, un[2 * k], un[2 * k + 1]))
        L.append([I('s_mov_b32 s%d, %d' % (sT1, OFF_Y)),
                  I('buffer_store_dwordx4 v[160:163], v172, %s, s%d offen sc1' % (srd(SWS), sT1))])
        L.append(I('buffer_store_dwordx4 v[164:167], v172, %s, s%d offen offset:512 sc1' % (srd(SWS), sT1)))
        L.append(I('buffer_store_dwordx4 v[168:171], v173, %s, s%d offen offset:1024 sc1' % (srd(SWS), sT1), tag='y'))
        T.spread(L, o0 + 31, o0 + 80)
        self.sig_y = (o0 + 100, ['y'], self.signal(186, 64, 1, None))
        T.at(o0 + 190.5, self.poll_issue(vM, 64))
        T.at(o0 + 215.5, self.poll_check(vM, 64, 0, 16))
        L = [[I('s_mov_b32 s%d, %d' % (sT2, OFF_Y))]]
        L += ['buffer_load_dwordx4 %s, v%d, %s, s%d offen offset:%d sc1' % (ar(4 * s, 4), vRSTD, srd(SWS), sT2, s * 32)
              for s in range(36)]
        T.spread(L, o0 + 216, o0 + 270)
        p3 = self.voff_pair(vDB, 9216, 186, 187)
        self.pre_dma[30] = p3
        p3s = ['v_lshrrev_b32 v146, 2, v%d' % vLANE,
               'v_mul_u32_u24 v146, 9216, v146',
               'v_and_b32 v147, 3, v%d' % vLANE,
               'v_lshlrev_b32 v147, 4, v147',
               'v_add_u32 v%d, v146, v147' % vDC]
        for i in range(1, 4):
            p3s.append('v_add_u32 v%d, %d, v%d' % (vDC + i, i * (16 * 9216 - 1024), vDC))
        p3s += ['v_and_b32 v146, 56, v%d' % vP0,
                'v_and_b32 v147, 12, v%d' % vLANE,
                'v_lshlrev_b32 v147, 4, v147',
                'v_add_u32 v146, v146, v147',
                'v_and_b32 v147, 32, v%d' % vLANE,
                'v_lshlrev_b32 v147, 4, v147',
                'v_add_u32 v%d, v146, v147' % vKS,
                'v_add_u32 v%d, 0x10000, v%d' % (vKS + 1, vKS),
                'v_add_u32 v%d, 0x20000, v%d' % (vKS + 2, vKS)]
        self.pre_dma[38] = p3s
        h0 = T.nm
        self.stamp(5)
        T.at(h0 + 26.5, [I('v_mov_b32 v%d, 0x%08x' % (vC0, f2u(GK0))), I('v_mov_b32 v%d, 0x%08x' % (vC1, f2u(GK1)))])
        self.sig_s = (h0 + 40, ['sp8_3'], self.signal(144, 128, 1, None))
        HT = 184
        ends = []
        for p in range(4):
            a = 96 - 32 * (p % 2)
            self.pair_phase(30 + 2 * p, 2, 18, [vr(a, 16), vr(a + 16, 16)], lambda s: ar(4 * s, 4), True)
            ends.append(T.nm)
        for k in range(36):
            self.mm(vr(148, 16), (38, k * 1024, 's'), ar(4 * k, 4), '0' if k == 0 else None)
        f0 = T.nm
        self.stamp(6)
        for p in range(4):
            a = 96 - 32 * (p % 2)
            regs = list(range(a, a + 32))
            L = self.cvt_store_expand(self.gelu(regs, 140, True), regs, HT + 16 * p, None)
            if p < 3:
                T.spread(L, ends[p] + 3, ends[p + 1] - 1)
            else:
                T.spread(L, ends[p] + 3, f0 + 0)
        regs = list(range(148, 164))
        L = self.cvt_store_expand(self.gelu(regs, 144, True), regs, HT + 64, None)
        T.spread(L, f0 + 3, f0 + 31)
        T.at(f0 + 31.5, I('s_add_u32 s%d, s%d, %d' % (sPS, sPS, OFF_HP - OFF_SP - 9 * 4096)))
        out_phase(39, 18, lambda k: vr(HT + 4 * k, 4), 'hp', True)
        self.stamp(7)
        self.final()
        self.place_ring()

    def final(self):
        T = self.T
        n = T.now
        n(I('', kind='ringbar', need=['hp8_3']))
        for x in self.signal(144, 192, 1, None): n(x)
        n('s_lshr_b32 s%d, s%d, 2' % (sT0, sJ))
        n('s_lshl_b32 s%d, s%d, 6' % (sT1, sRB))
        n('s_add_u32 s%d, s%d, s%d' % (sT0, sT0, sT1))
        n('s_mul_i32 s%d, s%d, %d' % (sFB, sT0, SLOT))
        n('s_add_u32 s%d, s%d, s%d' % (sFB, sFB, sL9))
        n('s_and_b32 s%d, s%d, 3' % (sT0, sJ))
        n('s_lshl_b32 s%d, s%d, 7' % (sT0, sT0))
        n('v_lshrrev_b32 v40, 4, v%d' % vLANE)
        n('s_mov_b32 s%d, %d' % (sT1, 4 * PART))
        n('v_mul_lo_u32 v41, v40, s%d' % sT1)
        n('v_and_b32 v42, 8, v%d' % vLANE)
        n('v_lshlrev_b32 v43, 6, v42')
        n('v_and_b32 v44, 7, v%d' % vLANE)
        n('v_lshlrev_b32 v45, 4, v44')
        n('v_add3_u32 v41, v41, v43, v45')
        n('v_add_u32 v41, s%d, v41' % sT0)
        n('s_lshl_b32 s%d, s%d, 4' % (sT0, sRB))
        n('s_add_u32 s%d, s%d, s%d' % (sT0, sT0, sJ))
        n('s_mul_i32 s%d, s%d, %d' % (sT0, sT0, 8 * ROW))
        n('s_mul_i32 s%d, s%d, 288' % (sT1, sW))
        n('s_add_u32 s%d, s%d, s%d' % (sT0, sT0, sT1))
        n('v_mul_u32_u24 v46, %d, v44' % ROW)
        n('v_lshlrev_b32 v42, 1, v42')
        n('v_lshlrev_b32 v40, 2, v40')
        n('v_add3_u32 v46, v46, v42, v40')
        n('v_add_u32 v46, s%d, v46' % sT0)
        n('s_mov_b32 s%d, %d' % (sT1, OFF_X1))
        XV, X1V = 2, 11
        for i in range(9):
            n('buffer_load_dword v%d, v46, %s, 0 offen offset:%d' % (XV + i, srd(SX), i * 32))
        for i in range(9):
            n('buffer_load_dword v%d, v46, %s, s%d offen offset:%d sc1' % (X1V + i, srd(SWS), sT1, i * 32))
        LD = 112
        res = {}
        for name, off, cnt, R in (('s', OFF_SP, 128, 48), ('h', OFF_HP, 192, 66)):
            n(self.poll_issue(vM, cnt))
            for x in self.poll_check(vM, cnt, 0, 16): n(x)
            for i0 in range(0, 9, 4):
                for e in range(4):
                    n('s_add_u32 s%d, s%d, %d' % (sD, sFB, off + e * PART + i0 * 1024))
                    for i in range(i0, min(i0 + 4, 9)):
                        n('buffer_load_dwordx4 %s, v41, %s, s%d offen offset:%d sc1'
                          % (vr(LD + 16 * i + 4 * e, 4), srd(SWS), sD, (i - i0) * 1024))
            for i in range(9):
                A = 88 + 8 * (i % 2)
                for e in range(4):
                    for k in range(4):
                        src = LD + 16 * i + 4 * e + k
                        n('v_dot2_f32_bf16 v%d, v%d, s%d, %s' % (A + 2 * k, src, sLO, '0' if e == 0 else 'v%d' % (A + 2 * k)))
                        n('v_dot2_f32_bf16 v%d, v%d, s%d, %s' % (A + 2 * k + 1, src, sHI, '0' if e == 0 else 'v%d' % (A + 2 * k + 1)))
                for f in range(4): n('v_permlane32_swap_b32 v%d, v%d' % (A + f, A + f + 4))
                for f in range(4): n('v_add_f32 v%d, v%d, v%d' % (A + f, A + f, A + f + 4))
                for f in range(2): n('v_permlane16_swap_b32 v%d, v%d' % (A + f, A + f + 2))
                for f in range(2): n('v_add_f32 v%d, v%d, v%d' % (R + 2 * i + f, A + f, A + f + 2))
        S, H = 48, 66
        B = 112
        for i in range(9):
            n('v_lshlrev_b32 v%d, 16, v%d' % (B + 2 * i, X1V + i))
            n('v_and_b32 v%d, 0xffff0000, v%d' % (B + 2 * i + 1, X1V + i))
        for k in range(18): n('v_add_f32 v%d, v%d, v%d' % (H + k, H + k, B + k))
        for k in range(18): n('v_mul_f32 v%d, 0x%08x, v%d' % (B + k, f2u(-math.log2(math.e)), H + k))
        for k in range(18): n('v_exp_f32 v%d, v%d' % (B + k, B + k))
        for k in range(18): n('v_add_f32 v%d, 1.0, v%d' % (B + k, B + k))
        for k in range(18): n('v_rcp_f32 v%d, v%d' % (B + k, B + k))
        for k in range(18): n('v_mul_f32 v%d, v%d, v%d' % (H + k, H + k, B + k))
        for i in range(9):
            n('v_lshlrev_b32 v%d, 16, v%d' % (B + 2 * i, XV + i))
            n('v_and_b32 v%d, 0xffff0000, v%d' % (B + 2 * i + 1, XV + i))
        for k in range(18): n('v_fmac_f32 v%d, v%d, v%d' % (B + k, S + k, H + k))
        for i in range(9):
            n('v_cvt_pk_bf16_f32 v%d, v%d, v%d' % (S + i, B + 2 * i, B + 2 * i + 1))
        for i in range(9):
            n('buffer_store_dword v%d, v46, %s, 0 offen offset:%d' % (S + i, srd(SOUT), i * 32))
        self.stamp(8)

    def place_ring(self):
        T = self.T
        D = self.D
        ns = len(self.slots)
        first = {}
        last = {}
        for u in self.uses:
            first.setdefault(u[1], u[0])
            last[u[1]] = u[4]
        bpos = {-1: -0.02}
        for S in range(0, ns - 1):
            lo = (last[S - 1] + 1) if S >= 1 else 0
            hi = first[S + 1] - D - 2
            assert lo <= hi, (S, lo, hi)
            bpos[S] = int((lo + hi) // 2) + 0.05
        self.bpos = bpos
        sigs = [self.sig_h, self.sig_x1, self.sig_y, self.sig_s]
        extra = {}
        after = {}
        for p, tags, ins in sigs:
            S = min(s for s in bpos if bpos[s] >= p)
            extra.setdefault(S, []).extend(tags)
            after.setdefault(S, []).extend(ins)
        for S in range(-1, ns - 1):
            T.at(bpos[S], I('', kind='ringbar', need=[('slot', S + 1)] + extra.get(S, [])))
            for x in after.get(S, []):
                T.at(bpos[S] + 0.9, x)
            tgt = S + 3
            if S >= 0 and tgt < ns:
                a = int(bpos[S]) + 1
                b = int(bpos[S + 1]) - 1
                if tgt in self.pre_dma:
                    pre = self.pre_dma[tgt]
                    T.spread(pre, a, a + 8)
                    a += 8
                T.spread(self.slots[tgt], a, b)
        prev = -1.0
        for n, (m0, slot, off, pat, m1) in enumerate(self.uses):
            p = m0 - D
            if n >= NFR:
                p = max(p, self.uses[n - NFR][4])
            p = p + 0.1
            p = max(p, bpos[slot - 1] + 0.01, prev)
            prev = p
            addr = (slot % 4) * SLOT + off
            wnd, o = addr >> 16, addr & 0xffff
            f = FR0 + 4 * (n % NFR)
            if pat == 'k':
                ins = [I('ds_read_b128 %s, v%d offset:%d' % (vr(f, 4), vKS + wnd, o))]
            else:
                b = {'p0': vP0, 'p1': vP1, 's': vKS}[pat] + wnd
                d = 256 if pat == 's' else 512
                ins = [I('ds_read_b64_tr_b16 %s, v%d offset:%d' % (vr(f, 2), b, o)),
                       I('ds_read_b64_tr_b16 %s, v%d offset:%d' % (vr(f + 2, 2), b, o + d))]
            for k, x in enumerate(ins):
                x.slot = slot
                T.at(p + (1.0 if (k == 1 and m1 > m0 and p + 1.0 < m0 - 2) else 0.0), x)

    def slow_path(self):
        return ['L_slow:', 's_branch L_slowret']

    def text(self):
        prog = self.T.linear()
        if self.stamps:
            p2 = []
            for i in prog:
                if i.kind == 'stamp':
                    k = int(i.txt[5:])
                    p2.append(I('s_waitcnt lgkmcnt(0)'))
                    p2.append(I('s_memtime s[%d:%d]' % (sTM, sTM + 1)))
                    p2.append(I('s_waitcnt lgkmcnt(0)'))
                    p2.append(I('v_mov_b32 v%d, s%d' % (vPOLL, sTM)))
                    p2.append(I('s_lshl_b32 s%d, s2, 6' % (sTM + 2)))
                    p2.append(I('s_add_u32 s%d, s%d, %d' % (sTM + 2, sTM + 2, OFF_DUMP)))
                    p2.append(I('buffer_store_dword v%d, v%d, %s, s%d offen offset:%d' % (vPOLL, vFLAG, srd(SWS), sTM + 2, 4 * k)))
                else:
                    p2.append(i)
            prog = p2
        prog = insert_waits(prog, self.lds_age)
        st = []
        prog = fix_hazards(prog, st)
        self.nop_stats = st
        self.prog = prog
        hdr = open('recurrent_scan__sliding_block_cached__mixer_s_mlp__prompt.s.ref').read().split('\n')
        head = [l for l in hdr[:16] if l.startswith(';') and '@launch' not in l]
        s = '\n'.join(head) + '\n'
        s += '; @launch grid=(256,1,1) block=(256,1,1) lds=%d\n' % LDS_BYTES
        s += '.amdgcn_target "amdgcn-amd-amdhsa--gfx950"\n.text\n.globl %s\n.p2align 8\n.type %s,@function\n%s:\n' % (NAME, NAME, NAME)
        s += render(prog)
        s += 'L_end:\ns_endpgm\n'
        s += '\n'.join(self.tail + self.slow_path()) + '\n'
        s += '''.section .rodata,"a"
.p2align 6
.amdhsa_kernel %s
  .amdhsa_next_free_vgpr 512
  .amdhsa_next_free_sgpr 102
  .amdhsa_accum_offset 256
  .amdhsa_group_segment_fixed_size 0
  .amdhsa_kernarg_size 104
  .amdhsa_user_sgpr_count 2
  .amdhsa_user_sgpr_kernarg_segment_ptr 1
  .amdhsa_system_sgpr_workgroup_id_x 1
.end_amdhsa_kernel
''' % NAME
        return s


if __name__ == '__main__':
    kw = eval('dict(%s)' % (sys.argv[2] if len(sys.argv) > 2 else ''))
    g = Gen(**kw)
    g.build()
    t = g.text()
    open(sys.argv[1], 'w').write(t)
    from collections import Counter
    c = Counter(i.kind for i in g.prog)
    print('bytes', len(t), 'instr', len(g.prog), dict(c))
    print('nops', len(g.nop_stats), sum(x[1] for x in g.nop_stats))
```
